```python
import torch

def _softmax(x, axis=-1):
    return torch.softmax(x, dim=axis)
def _gelu(x):
    return torch.nn.functional.gelu(x, approximate="tanh")
def _silu(x):
    return torch.nn.functional.silu(x)
def _sigmoid(x):
    return torch.sigmoid(x)
def _layernorm(x, axis=-1, eps=1e-5):
    m = x.mean(dim=axis, keepdim=True)
    v = x.var(dim=axis, keepdim=True, unbiased=False)
    return (x - m) / torch.sqrt(v + eps)
def _scatter_add(tgt, idx, src, axis=0):
    return tgt.clone().index_add_(axis, idx, src)
def _segment_sum(src, seg, n):
    out = torch.zeros((n,) + src.shape[1:], dtype=src.dtype)
    return out.index_add_(0, seg, src)
def _pad(x, pw):
    flat = tuple(v for pair in reversed(pw) for v in pair)
    return torch.nn.functional.pad(x, flat)

kernel_name = 'standalone__gqa_block_cached__near_ridge'

def setup_inputs():

    _w = (lambda a: (lambda t: t.to(torch.bfloat16) if t.is_floating_point() else t)(torch.as_tensor(a)))
    B, Sq, D = 16, 96, 448
    Hq, Hkv, Sk, Dh = 16, 8, 1024, 256
    assert Hq % Hkv == 0, (Hq, Hkv)
    return {
        "x": _w((lambda *s: torch.randn(*s, dtype=torch.bfloat16) * 0.8)(B, Sq, D)),
        "k_cache": _w((lambda *s: torch.randn(*s, dtype=torch.bfloat16) * 0.8)(B, Hkv, Sk, Dh)),
        "v_cache": _w((lambda *s: torch.randn(*s, dtype=torch.bfloat16) * 0.05)(B, Hkv, Sk, Dh)),
        "wq": _w((lambda *s: torch.randn(*s, dtype=torch.bfloat16) * 0.8)(D, Hq * Dh) * (D ** -0.5)),
        "wo": _w((lambda *s: torch.randn(*s, dtype=torch.bfloat16) * 0.05)(Hq * Dh, D) * ((Hq * Dh) ** -0.5)),
    }

def reference(x, k_cache, v_cache, wq, wo):
    B, Sq, D = x.shape
    Hq, Dh = 16, 256
    Hkv = k_cache.shape[1]
    rep = Hq // Hkv
    q = (lambda x, *d: x.permute(*d))((x @ wq).reshape(B, Sq, Hq, Dh), 0, 2, 1, 3)
    k = (lambda x, n, axis: torch.repeat_interleave(x, n, dim=axis))(k_cache, rep, axis=1)
    v = (lambda x, n, axis: torch.repeat_interleave(x, n, dim=axis))(v_cache, rep, axis=1)
    scores = torch.einsum("bhqd,bhkd->bhqk", q, k) * (Dh ** -0.5)
    p = _softmax(scores, axis=-1)
    o = torch.einsum("bhqk,bhkd->bhqd", p, v)
    return (lambda x, *d: x.permute(*d))(o, 0, 2, 1, 3).reshape(B, Sq, Hq * Dh) @ wo
```

```python
import re
REG = re.compile(r'\b([vas])(?:(\d+)|\[(\d+):(\d+)\])')
TRANS = ("v_exp_f32", "v_log_f32", "v_rcp_f32", "v_rsq_f32", "v_sqrt_f32", "v_sin_f32", "v_cos_f32")

def regs_of(tok):
    out = []
    for m in REG.finditer(tok):
        k = m.group(1)
        if m.group(2) is not None: out.append((k, int(m.group(2))))
        else: out += [(k, i) for i in range(int(m.group(3)), int(m.group(4)) + 1)]
    if re.search(r'\bvcc\b', tok): out += [("s", 106), ("s", 107)]
    if re.search(r'\bm0\b', tok): out.append(("s", 124))
    if re.search(r'\bexec\b', tok): out += [("s", 126), ("s", 127)]
    return out

class Ins:
    __slots__ = ("text", "op", "cls", "dst", "src", "a", "b", "c", "passes", "states", "lds")
    def __init__(self, text):
        self.text = text
        t = text.split(";")[0].strip()
        parts = t.split(None, 1)
        self.op = op = parts[0]
        ops = [o.strip() for o in parts[1].split(",")] if len(parts) > 1 else []
        self.dst = []; self.src = []; self.a = self.b = self.c = []; self.passes = 0; self.states = 1; self.lds = False
        if op.startswith("v_mfma"):
            self.cls = "mfma"; self.dst = regs_of(ops[0]); self.a = regs_of(ops[1]); self.b = regs_of(ops[2]); self.c = regs_of(ops[3])
            self.src = self.a + self.b + self.c
            self.passes = 8 if "32x32" in op else 4
        elif op.startswith("v_"):
            self.cls = "valu"
            self.dst = regs_of(ops[0]); self.src = sum((regs_of(o) for o in ops[1:]), [])
            if op.startswith(("v_fmac", "v_permlane", "v_writelane")): self.src += self.dst
            if op.startswith("v_permlane"): self.dst = self.dst + regs_of(ops[1])
            if op.startswith(("v_add_co", "v_sub_co", "v_addc_co")): self.dst += regs_of(ops[1]); self.src = sum((regs_of(o) for o in ops[2:]), [])
            if "dpp" in op: self.src += self.dst
        elif op.startswith("ds_"):
            self.cls = "ds"
            if op.startswith(("ds_read", "ds_swizzle", "ds_bpermute", "ds_permute")) or "rtn" in op:
                self.dst = regs_of(ops[0]); self.src = sum((regs_of(o) for o in ops[1:]), [])
            else: self.src = sum((regs_of(o) for o in ops), [])
        elif op.startswith(("buffer_", "global_")):
            self.cls = "vmem"
            self.lds = bool(re.search(r'\blds\b', t))
            if "load" in op and not self.lds:
                self.dst = regs_of(ops[0]); self.src = sum((regs_of(o) for o in ops[1:]), [])
            elif "atomic" in op and re.search(r'\bsc0\b', t):
                self.dst = regs_of(ops[0]); self.src = sum((regs_of(o) for o in ops[(0 if op.startswith("buffer") else 1):]), [])
            else: self.src = sum((regs_of(o) for o in ops), [])
            if self.lds: self.src.append(("s", 124))
        elif op.startswith("s_"):
            self.cls = "salu"
            if op == "s_nop": self.states = int(ops[0], 0) + 1
            elif op.startswith(("s_cmp", "s_cbranch", "s_branch", "s_waitcnt", "s_barrier", "s_endpgm", "s_sleep", "s_setprio", "s_bitcmp")):
                self.src = sum((regs_of(o) for o in ops), [])
            else:
                self.dst = regs_of(ops[0]); self.src = sum((regs_of(o) for o in ops[1:]), [])
                if "saveexec" in op: self.dst += [("s", 126), ("s", 127)]
        else:
            raise ValueError("unknown op " + text)

def need(p, c):
    n = 0
    pd = set(p.dst)
    if p.cls == "valu":
        vd = {r for r in pd if r[0] != "s"}; sd = pd - vd
        if c.cls == "mfma" and vd & set(c.src): n = max(n, 2)
        if c.cls == "mfma" and (("s", 126) in sd): n = max(n, 4)
        if c.cls == "valu":
            if p.op.startswith(TRANS) and not c.op.startswith(TRANS) and vd & set(c.src): n = max(n, 1)
            if p.op.startswith(TRANS) and vd & set(c.src): n = max(n, 1)
            if c.op.startswith(("v_readfirstlane", "v_readlane")) and vd & set(c.src): n = max(n, 1)
            if (c.op.startswith("v_permlane") or "dpp" in c.op) and vd & set(c.src): n = max(n, 2)
            if sd & set(c.src): n = max(n, 4 if c.op.startswith(("v_readlane", "v_writelane")) else 2)
        if c.cls == "vmem" and sd & set(c.src): n = max(n, 5)
        if c.cls == "salu" and sd & set(c.src): n = max(n, 2)
        if c.op.startswith("s_cbranch_vcc") and ("s", 106) in sd: n = max(n, 2)
    elif p.cls == "mfma":
        big = p.passes == 8
        if c.cls == "mfma":
            if pd & (set(c.a) | set(c.b)): n = max(n, 12 if big else 8)
            if pd & set(c.c) and not (p.dst == c.c and p.passes == c.passes): n = max(n, 10 if big else 6)
        elif c.cls in ("valu", "ds", "vmem"):
            if pd & (set(c.src) | set(c.dst)): n = max(n, 12 if big else 8)
            if c.cls == "valu" and set(p.c) & set(c.dst): n = max(n, 7 if big else 3)
    elif p.cls == "salu":
        if ("s", 124) in pd and c.cls == "vmem" and c.lds: n = max(n, 1)
    elif p.cls == "vmem":
        if ("store" in p.op) and (p.op.endswith("x4") or p.op.endswith("x3")) and c.cls in ("valu", "ds", "vmem", "mfma"):
            data = regs_of(p.text.split(None, 1)[1].split(",")[0 if p.op.startswith("buffer") else 1])
            if set(data) & set(c.dst): n = max(n, 2)
    return n

class Em:
    def __init__(self):
        self.lines = []
        self.hist = []
        self.lq = []
        self.vq = []
        self.nops = 0
        self.count = {}
    def raw(self, t): self.lines.append(t)
    def comment(self, t): self.lines.append("    ; " + t)
    def label(self, name, keep=False):
        self.lines.append(name + ":")
    def _push(self, ins):
        self.lines.append("    " + ins.text); self.hist.append(ins)
        if len(self.hist) > 24: self.hist.pop(0)
        self.count[ins.cls] = self.count.get(ins.cls, 0) + 1
    def e(self, text, tag=None):
        ins = Ins(text)
        used = set(ins.src) | set(ins.dst)
        ln = None
        for i, d in enumerate(self.lq):
            if d & used: ln = len(self.lq) - 1 - i
        vn = None
        for i, (tg, d) in enumerate(self.vq):
            if d & used: vn = len(self.vq) - 1 - i
        if ln is not None or vn is not None: self.wait(vm=vn, lgkm=ln)
        dist = 0; req = 0
        for p in reversed(self.hist):
            r = need(p, ins) - dist
            if r > req: req = r
            dist += p.states
            if dist >= 14: break
        while req > 0:
            k = min(req, 16); self._push(Ins(f"s_nop {k-1}")); req -= k; self.nops += 1
        self._push(ins)
        if ins.cls == "ds": self.lq.append(set(ins.dst))
        if ins.cls == "vmem" and not ins.op.startswith(("buffer_inv",)): self.vq.append((tag, set(ins.dst)))
        return ins
    def wait(self, vm=None, lgkm=None):
        parts = []
        if vm is not None:
            vm = min(vm, 63)
            if vm < len(self.vq):
                parts.append(f"vmcnt({vm})"); self.vq = self.vq[len(self.vq) - vm:] if vm else []
        if lgkm is not None:
            lgkm = min(lgkm, 15)
            if lgkm < len(self.lq):
                parts.append(f"lgkmcnt({lgkm})"); self.lq = self.lq[len(self.lq) - lgkm:] if lgkm else []
        if parts: self._push(Ins("s_waitcnt " + " ".join(parts)))
    def force_wait(self, vm=None, lgkm=None):
        parts = []
        if vm is not None:
            parts.append(f"vmcnt({vm})"); self.vq = self.vq[max(0, len(self.vq) - vm):] if vm else []
        if lgkm is not None:
            parts.append(f"lgkmcnt({lgkm})"); self.lq = self.lq[max(0, len(self.lq) - lgkm):] if lgkm else []
        self._push(Ins("s_waitcnt " + " ".join(parts)))
    def wait_tag(self, tag, lgkm=None):
        n = None
        for i, (tg, d) in enumerate(self.vq):
            if tg == tag: n = len(self.vq) - 1 - i
        self.wait(vm=n, lgkm=lgkm)
    def text(self): return "\n".join(self.lines) + "\n"

def interleave(main, fill, ratio=None, start=0):
    out = []; n = len(main) - start; m = len(fill); j = 0
    for i, x in enumerate(main):
        out.append(x)
        if i >= start:
            tgt = ((i - start + 1) * m + n - 1) // n if ratio is None else min(m, int((i - start + 1) * ratio))
            while j < tgt: out.append(fill[j]); j += 1
    out += fill[j:]
    return out
```

```python
import sys, math, struct
from asmlib import Em, interleave

SLOT = 33792
K0, K1, V0, V1 = 0, SLOT, 2 * SLOT, 3 * SLOT
PB = 4 * SLOT
FB = PB + 12288
MISC = FB + 15360
FLAG = MISC + 768
XB = V0
QX = V1
LDS = 163840
NAME1 = "gqa_main_kernel"
NAME2 = "gqa_reduce_kernel"

def f32(x): return "0x%08x" % struct.unpack("<I", struct.pack("<f", x))[0]
def vr(b, n=4): return f"v[{b}:{b+n-1}]"
def ar(b, n=4): return f"a[{b}:{b+n-1}]"

class Cfg:
    kvpol = "nt"; xpol = ""; wpol = ""; ypol = ""; ylpol = ""
    T = 12.0
    stamps = False
    dbg = None

def kd(name, vgpr, sgpr, acc):
    return f""".section .rodata,"a"
.p2align 6
.amdhsa_kernel {name}
  .amdhsa_next_free_vgpr {vgpr}
  .amdhsa_next_free_sgpr {sgpr}
  .amdhsa_accum_offset {acc}
  .amdhsa_group_segment_fixed_size 0
  .amdhsa_kernarg_size 64
  .amdhsa_user_sgpr_count 2
  .amdhsa_user_sgpr_kernarg_segment_ptr 1
  .amdhsa_system_sgpr_workgroup_id_x 1
  .amdhsa_float_denorm_mode_32 3
.end_amdhsa_kernel
.text
"""

SX, SK, SV, SWQ, SWO, SWS = 4, 8, 12, 16, 20, 24
sW, sB, sH = 28, 29, 30
sKoff, sVoff = 32, 33
sSelLo, sSelHi = 34, 35
sC, sT = 36, 37
sM0W = 38
sLoop = 39
sXoff, sWqoff, sWooff, sYoff = 40, 41, 42, 43
sRot = 44
sT0, sT1, sT2, sT3 = 45, 46, 47, 48
sRet = 50
sFloor = 52
sW1k = 53
sXb, sWqb, sWob, sYb = 54, 55, 56, 57
sStamp = 60
def srd(b): return f"s[{b}:{b+3}]"

vLane = 1
vKV = 2
vKrd, vVown, vVpar, vPwr, vPrd, vL16, vWOoff, vWrd = 6, 7, 8, 9, 10, 11, 12, 13
vFlagA, vLP = 14, 15
vM = 16
vMax = 19
vT = 20
vS = 32
vE = 56
vPo = 80
vPp = 92
vLacc = 104
vOnes = 116
vO = 120
vQwr, vQrd, vXoff, vWqoff, vXrd0, vXrd1, vOwr, vLrd = 248, 249, 250, 251, 252, 253, 254, 255
aQ, aK, aV = 0, 96, 160

def main_kernel(cfg):
    E = Em(); e = E.e
    stamp_n = [0]
    def stamp():
        if cfg.stamps:
            i = stamp_n[0]; stamp_n[0] += 1
            E.raw(f"    s_memrealtime s[{sStamp+2*i}:{sStamp+2*i+1}]")
    E.raw(f".globl {NAME1}\n.p2align 8\n.type {NAME1},@function\n{NAME1}:")
    stamp()
    e("s_cmp_ge_u32 s2, 256"); e("s_cbranch_scc1 L_done")
    E.raw("    s_load_dwordx8 s[80:87], s[0:1], 0")
    E.raw("    s_load_dwordx2 s[88:89], s[0:1], 32")
    E.raw("    s_load_dwordx2 s[90:91], s[0:1], 56")
    e("v_lshrrev_b32 v20, 6, v0"); e(f"v_and_b32 v{vLane}, 63, v0")
    e(f"v_readfirstlane_b32 s{sW}, v20")
    e(f"s_lshr_b32 s{sB}, s2, 4")
    e(f"s_and_b32 s{sT0}, s2, 7")
    e(f"s_lshr_b32 s{sT1}, s2, 3"); e(f"s_and_b32 s{sT1}, s{sT1}, 1")
    e(f"s_lshl_b32 s{sH}, s{sT0}, 1"); e(f"s_add_u32 s{sH}, s{sH}, s{sT1}")
    e(f"s_lshl_b32 s{sKoff}, s{sB}, 3"); e(f"s_add_u32 s{sKoff}, s{sKoff}, s{sT0}"); e(f"s_lshl_b32 s{sKoff}, s{sKoff}, 19")
    e(f"s_mov_b32 s{sVoff}, s{sKoff}")
    e(f"s_mul_i32 s{sT0}, s{sB}, 37"); e(f"s_lshr_b32 s{sT0}, s{sT0}, 8"); e(f"s_mul_i32 s{sT0}, s{sT0}, 7"); e(f"s_sub_u32 s{sRot}, s{sB}, s{sT0}")
    e(f"s_mul_i32 s{sM0W}, s{sW}, 1056"); e(f"s_lshl_b32 s{sW1k}, s{sW}, 10")
    e(f"s_mul_i32 s{sXb}, s{sB}, 86016"); e(f"s_mul_i32 s{sT0}, s{sW}, 7168"); e(f"s_add_u32 s{sXb}, s{sXb}, s{sT0}")
    e(f"s_lshl_b32 s{sWqb}, s{sH}, 9"); e(f"s_lshl_b32 s{sT1}, s{sW}, 7"); e(f"s_add_u32 s{sWqb}, s{sWqb}, s{sT1}")
    e(f"s_mul_i32 s{sWob}, s{sH}, 229376"); e(f"s_add_u32 s{sWob}, s{sWob}, s{sT0}")
    e(f"s_lshl_b32 s{sYb}, s{sB}, 4"); e(f"s_add_u32 s{sYb}, s{sYb}, s{sH}"); e(f"s_mul_i32 s{sYb}, s{sYb}, 86016")
    e(f"s_mul_i32 s{sT0}, s{sW}, 3072"); e(f"s_add_u32 s{sYb}, s{sYb}, s{sT0}")
    e(f"s_mov_b32 s{sSelLo}, 0x05040100"); e(f"s_mov_b32 s{sSelHi}, 0x07060302")
    e(f"s_mov_b32 s{sC}, {f32(math.log2(math.e) / 16.0)}"); e(f"s_mov_b32 s{sT}, {f32(cfg.T)}")
    e(f"s_mov_b32 s{sFloor}, 0xff800000")
    L = f"v{vLane}"
    e(f"v_lshrrev_b32 v20, 3, {L}"); e(f"v_and_b32 v21, 7, {L}"); e("v_lshrrev_b32 v22, 1, v20"); e("v_xor_b32 v22, v22, v21")
    e(f"s_and_b32 s{sT0}, s{sW}, 1"); e(f"s_lshl_b32 s{sT1}, s{sT0}, 2"); e(f"v_xor_b32 v22, s{sT1}, v22")
    e("v_mul_u32_u24 v23, 896, v20"); e(f"v_lshl_add_u32 v{vXoff}, v22, 4, v23")
    e("v_and_b32 v22, 6, v20"); e("v_xor_b32 v22, v22, v21"); e(f"v_lshl_add_u32 v{vWOoff}, v22, 4, v23")
    e(f"v_lshrrev_b32 v20, 4, {L}"); e(f"v_and_b32 v21, 15, {L}")
    e("v_lshlrev_b32 v22, 16, v20"); e(f"v_lshl_add_u32 v{vWqoff}, v21, 3, v22")
    E.raw("    s_waitcnt lgkmcnt(0)")
    for b, p, n in ((SX, 80, 1376256), (SK, 82, 67108864), (SV, 84, 67108864), (SWQ, 86, 3670016), (SWO, 88, 3670016), (SWS, 90, 256 * 86016 + (65536 if cfg.stamps or cfg.dbg else 0) + (cfg.dbg and 200 << 20 or 0))):
        e(f"s_mov_b32 s{b}, s{p}"); e(f"s_mov_b32 s{b+1}, s{p+1}"); e(f"s_mov_b32 s{b+2}, {n}"); e(f"s_mov_b32 s{b+3}, 0x20000")

    RAW = 24; NR = 6; AF = 216; aXf = 96
    def rot_adv(sreg):
        def f():
            e(f"s_add_u32 s{sreg}, s{sreg}, 1"); e(f"s_cmp_eq_u32 s{sreg}, 7"); e(f"s_cselect_b32 s{sreg}, 0, s{sreg}")
        return [f]
    sJx, sJw = sT2, sT3
    e(f"s_mov_b32 s{sJx}, s{sRot}"); e(f"s_mov_b32 s{sJw}, s{sRot}")
    def x_block(j):
        o = [f"s_lshl_b32 s{sXoff}, s{sJx}, 7", f"s_add_u32 s{sXoff}, s{sXoff}, s{sXb}"]
        for i in range(3):
            o.append(f"s_add_u32 m0, s{sW1k}, {XB + j * 12288 + i * 4096}")
            if i: o.append(f"s_add_u32 s{sXoff}, s{sXoff}, 28672")
            o.append((f"buffer_load_dwordx4 v{vXoff}, {srd(SX)}, s{sXoff} offen {cfg.xpol} lds", f"X{j}"))
        return o + rot_adv(sJx)
    def w_step(n):
        o = []
        if n % 2 == 0:
            o += [f"s_lshl_b32 s{sWqoff}, s{sJw}, 19", f"s_add_u32 s{sWqoff}, s{sWqoff}, s{sWqb}"] + rot_adv(sJw)
        else:
            o += [f"s_add_u32 s{sWqoff}, s{sWqoff}, {25 * 8192}"]
        rb = RAW + (n % NR) * 16
        for i in range(8):
            if i: o.append(f"s_add_u32 s{sWqoff}, s{sWqoff}, 8192")
            o.append(f"buffer_load_dwordx2 {vr(rb + 2 * i, 2)}, v{vWqoff}, {srd(SWQ)}, s{sWqoff} offen {cfg.wpol}")
        return o
    def emit(lst):
        for x in lst:
            if isinstance(x, tuple): e(x[0], tag=x[1])
            elif callable(x): x()
            else: e(x)
    emit(x_block(0)); emit(w_step(0)); emit(w_step(1)); emit(x_block(1)); emit(w_step(2)); emit(w_step(3)); emit(x_block(2))
    e(f"s_lshr_b32 s{sT1}, s{sW}, 1")
    e(f"v_lshlrev_b32 v{vL16}, 4, {L}")
    e(f"v_lshrrev_b32 v22, 5, {L}"); e(f"v_and_b32 v23, 31, {L}"); e("v_lshlrev_b32 v22, 12, v22"); e("v_lshl_add_u32 v22, v23, 4, v22")
    e(f"s_lshl_b32 s3, s{sW}, 9"); e(f"v_add_u32 v{vKV}, s3, v22")
    for j in range(1, 4): e(f"v_add_u32 v{vKV+j}, {j*8192}, v{vKV}")
    e("v_and_b32 v22, 7, v21"); e("v_mul_u32_u24 v22, 1056, v22"); e("v_lshrrev_b32 v23, 3, v21"); e("v_lshl_add_u32 v22, v23, 9, v22"); e("v_lshl_add_u32 v22, v20, 4, v22")
    e(f"s_mul_i32 s3, s{sT1}, 16896"); e(f"v_add_u32 v{vKrd}, s3, v22")
    e(f"v_bfe_u32 v22, {L}, 2, 3"); e("v_mul_u32_u24 v22, 1056, v22"); e(f"v_lshrrev_b32 v23, 5, {L}"); e("v_lshl_add_u32 v22, v23, 9, v22")
    e(f"v_and_b32 v23, 3, {L}"); e("v_lshl_add_u32 v22, v23, 3, v22")
    e(f"s_mul_i32 s3, s{sT1}, {16896 + 256}"); e(f"s_add_u32 s3, s3, {V0}"); e(f"v_add_u32 v{vVown}, s3, v22")
    e(f"s_mul_i32 s3, s{sT1}, {256 - 16896}"); e(f"s_add_u32 s3, s3, {V0 + 16896}"); e(f"v_add_u32 v{vVpar}, s3, v22")
    e(f"s_mul_i32 s3, s{sW}, 3072"); e(f"s_add_u32 s3, s3, {PB}"); e(f"v_add_u32 v{vPwr}, s3, v{vL16}")
    e(f"s_xor_b32 s3, s{sW}, 2"); e("s_mul_i32 s3, s3, 3072"); e(f"s_add_u32 s3, s3, {PB}"); e(f"v_add_u32 v{vPrd}, s3, v{vL16}")
    e(f"v_add_u32 v{vLP}, {PB}, v{vL16}")
    e(f"v_mov_b32 v{vFlagA}, {FLAG}")
    e(f"v_bfe_u32 v22, {L}, 3, 2"); e(f"v_xor_b32 v22, s{sW}, v22"); e("v_lshlrev_b32 v22, 5, v22"); e("v_lshl_add_u32 v22, v23, 3, v22")
    e(f"v_lshrrev_b32 v23, 2, {L}"); e(f"v_lshl_add_u32 v{vWrd}, v23, 7, v22")
    e("v_lshrrev_b32 v22, 1, v21"); e("v_xor_b32 v22, v22, v20"); e("v_lshlrev_b32 v22, 4, v22"); e("v_lshl_add_u32 v22, v21, 7, v22")
    e(f"v_add_u32 v{vXrd0}, {XB}, v22"); e(f"v_xor_b32 v{vXrd1}, 64, v{vXrd0}")
    e("v_lshrrev_b32 v22, 1, v20"); e("v_mul_u32_u24 v22, 6144, v22"); e("v_and_b32 v23, 1, v20"); e("v_lshl_add_u32 v22, v23, 9, v22"); e("v_lshl_add_u32 v22, v21, 4, v22")
    e(f"s_mul_i32 s3, s{sW}, 12288"); e(f"s_add_u32 s3, s3, {QX}"); e(f"v_add_u32 v{vQwr}, s3, v22")
    e(f"s_mul_i32 s3, s{sT0}, 3072"); e(f"s_add_u32 s3, s3, {QX}"); e(f"v_add_u32 v{vQrd}, s3, v{vL16}")
    e(f"s_mul_i32 s3, s{sW}, 6144"); e(f"s_add_u32 s3, s3, {K1}"); e(f"v_add_u32 v{vOwr}, s3, v{vL16}")
    e(f"v_lshlrev_b32 v22, 2, v21"); e(f"v_add_u32 v{vLrd}, {MISC}, v22")
    emit(w_step(4))
    for j in range(3, 7): emit(x_block(j))

    def kv_dma(which, slot, tag):
        o = []
        S = SK if which == "K" else SV; so = sKoff if which == "K" else sVoff
        for i in range(8):
            o.append(f"s_add_u32 m0, s{sM0W}, {slot + 4224 * i - (i & 1) * 2048}")
            off = " offset:2048" if i & 1 else ""
            o.append((f"buffer_load_dwordx4 v{vKV + (i >> 1)}, {srd(S)}, s{so} offen{off} {cfg.kvpol} lds", tag))
        o.append(f"s_add_u32 s{so}, s{so}, 32768")
        return o
    def perms(n):
        rb = RAW + (n % NR) * 16; af = AF + (n & 1) * 16; o = []
        for j in range(4):
            for d in range(4):
                o.append(f"v_perm_b32 v{af + 4 * j + d}, v{rb + 2 * (2 * d + 1) + (j >> 1)}, v{rb + 2 * (2 * d) + (j >> 1)}, s{sSelHi if j & 1 else sSelLo}")
        return o
    def xreads(n):
        j, kk = n >> 1, n & 1; o = []
        base = j * 12288 - (49152 if j >= 4 else 0)
        for qt in range(6):
            o.append(f"ds_read_b128 {ar(aXf + (n & 1) * 24 + 4 * qt)}, v{vXrd1 if kk else vXrd0} offset:{base + qt * 2048}")
        return o
    def qm(n):
        af = AF + (n & 1) * 16; o = []
        for qt in range(6):
            for j in range(4):
                d = vr(vO + (j * 6 + qt) * 4)
                o.append(f"v_mfma_f32_16x16x32_bf16 {d}, {vr(af + 4 * j)}, {ar(aXf + (n & 1) * 24 + 4 * qt)}, {d if n else 0}")
        return o
    def xbar(tag):
        def f():
            E.wait_tag(tag); e("s_barrier")
        return f
    kpre = kv_dma("K", K0, "K0") + kv_dma("K", K1, "K1")
    kchunks = []; cur = []; nd = 0
    for x in kpre:
        cur.append(x)
        if isinstance(x, tuple):
            nd += 1
    idx = [i for i, x in enumerate(kpre) if isinstance(x, tuple)]
    cuts = [0] + [idx[k] + 1 for k in range(1, 16, 2)]
    cuts[-1] = len(kpre)
    kchunks = [kpre[cuts[i]:cuts[i + 1]] for i in range(8)]
    xbar("X0")(); emit(xreads(0)); emit(perms(0)); emit(w_step(5))
    stamp()
    for n in range(14):
        fill = []
        if n + 1 < 14:
            if n + 1 == 2: fill.append(xbar("X1"))
            if n + 1 == 4: fill.append(xbar("X2"))
            if n + 1 == 6: fill.append(xbar("X6"))
            if n + 1 == 8: fill += [f"v_add_u32 v{vXrd0}, 49152, v{vXrd0}", f"v_add_u32 v{vXrd1}, 49152, v{vXrd1}"]
            fill += xreads(n + 1) + perms(n + 1)
            if n + 1 + NR - 1 < 14 and n >= 0 and n + NR < 14: fill += w_step(n + NR)
            if 2 <= n < 10: fill += kchunks[n - 2]
        else:
            def bq1():
                E.wait(lgkm=0); e("s_barrier")
            fill = [bq1] + kv_dma("V", V0, "V0")
        emit(interleave(qm(n), fill, start=(1 if n + 1 < 14 else 4)))
    for qt6 in range(6):
        for hh in range(2):
            t = vE + ((qt6 * 2 + hh) % 6) * 4
            for d in range(4):
                rr = 2 * hh + (d >> 1); j = 2 * (d & 1)
                e(f"v_cvt_pk_bf16_f32 v{t + d}, v{vO + (j * 6 + qt6) * 4 + rr}, v{vO + ((j + 1) * 6 + qt6) * 4 + rr}")
            e(f"ds_write_b128 v{vQwr}, {vr(t)} offset:{qt6 * 1024 + hh * 256}")
    E.wait(lgkm=0); e("s_barrier")
    for ks in range(8):
        for qt in range(3):
            e(f"ds_read_b128 {ar(aQ + (ks * 3 + qt) * 4)}, v{vQrd} offset:{ks * 6144 + qt * 1024}")
    for i in range(96): e(f"v_mov_b32 v{vO + i}, 0")
    for i in range(12): e(f"v_mov_b32 v{vLacc + i}, 0")
    for i in range(4): e(f"v_mov_b32 v{vOnes + i}, 0x3f803f80")
    for i in range(3): e(f"v_mov_b32 v{vM + i}, 0")
    stamp()

    ncall = [0]
    def kreads(slot):
        return [f"ds_read_b128 {ar(aK + (ks * 2 + kt) * 4)}, v{vKrd} offset:{slot + kt * 8448 + ks * 64}" for ks in range(8) for kt in range(2)]
    def check_and_pp():
        i = ncall[0]; ncall[0] += 1
        e(f"v_readfirstlane_b32 s{sT0}, v{vT}")
        e(f"s_cmp_eq_u32 s{sT0}, 0"); e(f"s_cbranch_scc1 L_noslow{i}")
        E.raw(f"    s_call_b64 s[{sRet}:{sRet+1}], L_slow")
        E.label(f"L_noslow{i}")
        for qt in range(3): e(f"ds_read_b128 {vr(vPp + 4 * qt)}, v{vPrd} offset:{qt * 1024}")
    def phaseA(slot, dma, check=True):
        kr = kreads(slot)
        if check: e(f"ds_read_b32 v{vT}, v{vFlagA}")
        emit(kr[:8]); emit(dma)
        if check: check_and_pp()
        m = []
        for ks in range(8):
            for kt in range(2):
                for qt in range(3):
                    d = vr(vS + (kt * 3 + qt) * 4)
                    m.append(f"v_mfma_f32_16x16x32_bf16 {d}, {ar(aK + (ks * 2 + kt) * 4)}, {ar(aQ + (ks * 3 + qt) * 4)}, {d if ks else 0}")
        emit(interleave(m, kr[8:], ratio=0.5))
    def softmax_parts():
        p1 = []; p2 = []
        for qt in range(3):
            for kt in range(2):
                for rr in range(4):
                    i = (kt * 3 + qt) * 4 + rr
                    p1.append(f"v_fma_f32 v{vE + i}, v{vS + i}, s{sC}, -v{vM + qt}")
        mx = [f"v_max3_f32 v{vMax}, v{vE}, v{vE+1}, v{vE+2}"]
        for i in range(3, 23, 2): mx.append(f"v_max3_f32 v{vMax}, v{vMax}, v{vE+i}, v{vE+i+1}")
        mx.append(f"v_max_f32 v{vMax}, v{vMax}, v{vE+23}")
        ex = [f"v_exp_f32 v{vE + i}, v{vE + i}" for qt in range(3) for kt in range(2) for i in range((kt * 3 + qt) * 4, (kt * 3 + qt) * 4 + 4)]
        for qt in range(3):
            for d in range(4):
                i = ((d >> 1) * 3 + qt) * 4 + 2 * (d & 1)
                p2.append(f"v_cvt_pk_bf16_f32 v{vPo + 4 * qt + d}, v{vE + i}, v{vE + i + 1}")
            p2.append(f"ds_write_b128 v{vPwr}, {vr(vPo + 4 * qt)} offset:{qt * 1024}")
        return p1, mx, ex, p2
    nfl = [0]
    def setflag():
        i = nfl[0]; nfl[0] += 1
        e(f"v_cmp_lt_f32 vcc, s{sT}, v{vMax}"); e(f"s_cbranch_vccz L_nf{i}")
        E.raw(f"    ds_write_b32 v{vFlagA}, v{vOnes}")
        E.label(f"L_nf{i}")
    def phaseB(vslot, dma, softmax=True, pre=None):
        so = vslot - V0
        rd = []
        for kg, base in ((0, vVown), (1, vVpar)):
            for dt in range(8):
                for hf in range(2):
                    rd.append(f"ds_read_b64_tr_b16 {ar(aV + (kg * 8 + dt) * 4 + 2 * hf, 2)}, v{base} offset:{so + hf * 8448 + dt * 32}")
        def mm(kg):
            P = vPo if kg == 0 else vPp; m = []
            for qt in range(3):
                d = vr(vLacc + 4 * qt); m.append(f"v_mfma_f32_16x16x32_bf16 {d}, {vr(vOnes)}, {vr(P + 4 * qt)}, {d}")
            for dt in range(8):
                for qt in range(3):
                    d = vr(vO + (dt * 3 + qt) * 4)
                    m.append(f"v_mfma_f32_16x16x32_bf16 {d}, {ar(aV + (kg * 8 + dt) * 4)}, {vr(P + 4 * qt)}, {d}")
            return m
        if pre: pre[0]()
        emit(rd[:12]); emit(dma)
        if pre: pre[1]()
        if softmax:
            p1, mx, ex, p2 = softmax_parts()
            f0 = interleave(p1 + mx + ex[:8], rd[12:])
            f1 = ex[8:] + [setflag] + p2
        else:
            f0 = rd[12:]; f1 = []
        emit(interleave(mm(0), f0)); emit(interleave(mm(1), f1, ratio=(2.0 if softmax else None)))
    def bar(vm=None, tag=None):
        if tag: E.wait_tag(tag, lgkm=0)
        else: E.force_wait(vm=vm, lgkm=0)
        e("s_barrier")
    KS = (K0, K1); VS = (V0, V1)
    bar(tag="K0")
    phaseA(K0, kv_dma("V", V1, "V1"), check=False)
    e(f"ds_write_b32 v{vFlagA}, v{vOnes}")
    bar(tag="K1"); phaseA(K1, kv_dma("K", K0, "K2"))
    bar(tag="V0"); phaseB(V0, kv_dma("K", K1, "K3"))
    E.wait_tag("K2")
    stamp()
    e(f"s_mov_b32 s{sLoop}, 0")
    E.raw(".p2align 3")
    E.label("L_loop")
    for par in range(2):
        bar(vm=16); phaseA(KS[par], kv_dma("V", VS[par], "v"))
        bar(vm=16); phaseB(VS[1 - par], kv_dma("K", KS[par], "k"))
    e(f"s_add_u32 s{sLoop}, s{sLoop}, 1"); e(f"s_cmp_lt_u32 s{sLoop}, 6"); e("s_cbranch_scc1 L_loop")
    E.vq = [("K14", set())] * 8 + [("V13", set())] * 8 + [("K15", set())] * 8
    sJo = sT2
    e(f"s_mov_b32 s{sJo}, s{sRot}")
    def w_dma(i, slot):
        o = [f"s_lshl_b32 s{sWooff}, s{sJo}, 7", f"s_add_u32 s{sWooff}, s{sWooff}, s{sWob}"]
        for n in range(8):
            o.append(f"s_add_u32 m0, s{sW1k}, {slot + n * 4096}")
            if n: o.append(f"s_add_u32 s{sWooff}, s{sWooff}, 28672")
            o.append((f"buffer_load_dwordx4 v{vWOoff}, {srd(SWO)}, s{sWooff} offen {cfg.wpol} lds", f"W{i}"))
        return o + rot_adv(sJo)
    WS = (K0, V0, V1)
    bar(tag="K14"); phaseA(K0, kv_dma("V", V0, "V14"))
    bar(tag="V13"); phaseB(V1, [])
    bar(tag="K15"); phaseA(K1, kv_dma("V", V1, "V15") + w_dma(0, WS[0]))
    bar(tag="V14"); phaseB(V0, [])
    stamp()
    bar(tag="V15")
    stamp()
    phaseB(V1, w_dma(1, WS[1]), softmax=False, pre=(lambda: e(f"ds_read_b32 v{vT}, v{vFlagA}"), check_and_pp))
    e(f"s_mul_i32 s3, s{sW}, 192"); e(f"v_add_u32 v{vT}, s3, v{vLrd}")
    for qt in range(3): e(f"ds_write_b32 v{vT}, v{vLacc + 4 * qt} offset:{qt * 64}")
    for j in range(4):
        for qt in range(3):
            t = vS + ((j * 3 + qt) % 12) * 4
            for d in range(4):
                src = vO + ((2 * j + (d >> 1)) * 3 + qt) * 4 + 2 * (d & 1)
                e(f"v_cvt_pk_bf16_f32 v{t + d}, v{src}, v{src + 1}")
            if j < 2: e(f"ds_write_b128 v{vOwr}, {vr(t)} offset:{(j * 3 + qt) * 1024}")
            elif j == 2: e(f"ds_write_b128 v{vPwr}, {vr(t)} offset:{12288 + qt * 1024}")
            else: e(f"ds_write_b128 v{vPrd}, {vr(t)} offset:{qt * 1024}")
    bar(tag="W0")
    stamp()
    aW = 192; vY = 32; vYp = 80; vRl = 104; vWb = 120
    for i in range(3): e(f"v_add_u32 v{vWb + i}, {WS[i]}, v{vWrd}")
    def wreads(i):
        return [f"ds_read_b64_tr_b16 {ar(aW + (i & 1) * 32 + ks * 4 + 2 * hf, 2)}, v{vWb + i % 3} offset:{ks * 4096 + hf * 2048}" for ks in range(8) for hf in range(2)]
    def oreads(ks):
        o = []
        s_, j = ks >> 2, ks & 3
        for qt6 in range(6):
            r_, qt = divmod(qt6, 3); w_ = 2 * s_ + r_
            dst = ar((ks * 6 + qt6) * 4)
            if j < 2: o.append(f"ds_read_b128 {dst}, v{vL16} offset:{K1 + w_ * 6144 + (j * 3 + qt) * 1024}")
            elif j == 2: o.append(f"ds_read_b128 {dst}, v{vLP} offset:{12288 + w_ * 3072 + qt * 1024}")
            else: o.append(f"ds_read_b128 {dst}, v{vLP} offset:{(w_ ^ 2) * 3072 + qt * 1024}")
        return o
    w0 = wreads(0)
    emit(w0[:4] + oreads(0) + oreads(1)); emit(w_dma(2, WS[2]))
    sJy = sT3
    e(f"s_mov_b32 s{sJy}, s{sRot}")
    def yepi(i):
        o = [f"s_mul_i32 s{sYoff}, s{sJy}, 12288", f"s_add_u32 s{sYoff}, s{sYoff}, s{sYb}"] + rot_adv(sJy)
        yb = vY + (i & 1) * 24; pb = vYp + (i & 1) * 12
        for m in range(3):
            for u in range(2):
                qt6 = 2 * m + u
                for rr in range(4): o.append(f"v_mul_f32 v{yb + qt6 * 4 + rr}, v{yb + qt6 * 4 + rr}, v{vRl + qt6}")
                for d in range(2): o.append(f"v_cvt_pk_bf16_f32 v{pb + 4 * m + 2 * u + d}, v{yb + qt6 * 4 + 2 * d}, v{yb + qt6 * 4 + 2 * d + 1}")
            o.append((f"buffer_store_dwordx4 {vr(pb + 4 * m)}, v{vL16}, {srd(SWS)}, s{sYoff} offen offset:{m * 1024} {cfg.ypol}", "Y"))
        return o
    def pm(i):
        yb = vY + (i & 1) * 24; m = []
        for ks in range(8):
            for qt6 in range(6):
                d = vr(yb + qt6 * 4)
                m.append(f"v_mfma_f32_16x16x32_bf16 {d}, {ar(aW + (i & 1) * 32 + ks * 4)}, {ar((ks * 6 + qt6) * 4)}, {d if ks else 0}")
        return m
    for i in range(7):
        m = pm(i)
        if i == 0:
            seq = []
            for ks in range(8):
                f = []
                if ks + 2 < 8: f = w0[2 * (ks + 2):2 * (ks + 2) + 2] + oreads(ks + 2)
                if ks == 6: f = [f"ds_read_b32 v{vRl + q}, v{vLrd} offset:{q * 64}" for q in range(6)]
                seq += interleave(m[ks * 6:ks * 6 + 6], f)
            emit(seq[:-8])
            bar(tag="W1"); emit(wreads(1)); emit(w_dma(3, WS[0])); emit(seq[-8:])
            for q in range(6): e(f"v_rcp_f32 v{vRl + q}, v{vRl + q}")
        else:
            emit(m[:4])
            fill = []
            if i + 1 < 7:
                bar(tag=f"W{i+1}")
                fill += wreads(i + 1)
                if i + 3 < 7: fill += w_dma(i + 3, WS[i % 3])
            fill = interleave(yepi(i - 1), fill) if fill else yepi(i - 1)
            emit(interleave(m[4:], fill, start=0))
    emit(yepi(6))
    stamp()
    if cfg.stamps:
        E.force_wait(vm=0); stamp()
        E.raw("    s_waitcnt lgkmcnt(0)")
        e("s_lshl_b32 s3, s2, 8"); e(f"s_lshl_b32 s{sT0}, s{sW}, 6"); e(f"s_add_u32 s3, s3, s{sT0}"); e(f"s_add_u32 s3, s3, {256 * 86016}")
        e("v_mov_b32 v20, 0")
        e("s_mov_b64 exec, 1")
        for i in range(stamp_n[0]):
            e(f"v_mov_b32 v21, s{sStamp + 2 * i}"); e(f"buffer_store_dword v21, v20, {srd(SWS)}, s3 offen offset:{4 * i}")
        assert stamp_n[0] <= 10
    E.label("L_done")
    e("s_endpgm")

    E.hist = []; E.lq = []; E.vq = []
    E.label("L_slow")
    e("s_nop 7")
    E.force_wait(lgkm=0)
    for qt in range(3):
        a = vS + qt * 4; b = vS + (3 + qt) * 4; t = vE + qt
        e(f"v_max3_f32 v{t}, v{a}, v{a+1}, v{a+2}"); e(f"v_max3_f32 v{t}, v{t}, v{a+3}, v{b}"); e(f"v_max3_f32 v{t}, v{t}, v{b+1}, v{b+2}"); e(f"v_max_f32 v{t}, v{t}, v{b+3}")
        e(f"v_fma_f32 v{t}, v{t}, s{sC}, -v{vM + qt}")
    e(f"v_and_b32 v{vE+4}, 15, v{vLane}"); e(f"v_lshrrev_b32 v{vE+5}, 4, v{vLane}"); e(f"v_lshlrev_b32 v{vE+4}, 4, v{vE+4}")
    e(f"v_sub_u32 v{vE+6}, v{vPwr}, v{vL16}"); e(f"v_add_u32 v{vE+6}, v{vE+6}, v{vE+4}")
    e(f"v_sub_u32 v{vE+7}, v{vPrd}, v{vL16}"); e(f"v_add_u32 v{vE+7}, v{vE+7}, v{vE+4}")
    e(f"v_lshl_add_u32 v{vE+5}, v{vE+5}, 2, v{vE+6}")
    for qt in range(3): e(f"ds_write_b32 v{vE+5}, v{vE+qt} offset:{qt*256}")
    E.wait(lgkm=0); e("s_barrier")
    for qt in range(3):
        e(f"ds_read_b128 {vr(vPo + 4 * qt)}, v{vE+6} offset:{qt*256}"); e(f"ds_read_b128 {vr(vPp + 4 * qt)}, v{vE+7} offset:{qt*256}")
    e(f"v_mov_b32 v{vE+8}, 0")
    for qt in range(3):
        a = vPo + 4 * qt; b = vPp + 4 * qt; t = vE + qt
        e(f"v_max3_f32 v{t}, v{a}, v{a+1}, v{a+2}"); e(f"v_max3_f32 v{t}, v{t}, v{a+3}, v{b}"); e(f"v_max3_f32 v{t}, v{t}, v{b+1}, v{b+2}"); e(f"v_max_f32 v{t}, v{t}, v{b+3}")
        e(f"v_ceil_f32 v{t}, v{t}"); e(f"v_max_f32 v{t}, s{sFloor}, v{t}")
        e(f"v_add_f32 v{vM + qt}, v{vM + qt}, v{t}")
        e(f"v_max_f32 v{t}, 0, v{t}"); e(f"v_sub_f32 v{t}, 0, v{t}"); e(f"v_exp_f32 v{vT + qt}, v{t}")
    E.wait(lgkm=0); e("s_barrier")
    e(f"ds_write_b32 v{vFlagA}, v{vE+8}")
    e(f"s_mov_b32 s{sFloor}, 0")
    for dt in range(8):
        for qt in range(3):
            for rr in range(4):
                r = vO + (dt * 3 + qt) * 4 + rr; e(f"v_mul_f32 v{r}, v{r}, v{vT + qt}")
    for qt in range(3):
        for rr in range(4):
            r = vLacc + 4 * qt + rr; e(f"v_mul_f32 v{r}, v{r}, v{vT + qt}")
    E.wait(lgkm=0)
    p1, mx, ex, p2 = softmax_parts()
    emit(p1 + ex + p2)
    E.wait(lgkm=0); e("s_barrier")
    e("s_nop 3")
    E.raw(f"    s_setpc_b64 s[{sRet}:{sRet+1}]")
    sys.stderr.write(f"main: {E.count} nops={E.nops}\n")
    return E.text() + kd(NAME1, 512, 96, 256)

def reduce_kernel(cfg):
    E = Em(); e = E.e
    E.raw(f".globl {NAME2}\n.p2align 8\n.type {NAME2},@function\n{NAME2}:")
    e("s_cmp_ge_u32 s2, 336"); e("s_cbranch_scc1 L_done2")
    E.raw("    s_load_dwordx2 s[4:5], s[0:1], 56"); E.raw("    s_load_dwordx2 s[8:9], s[0:1], 40")
    e("s_mul_i32 s12, s2, 3121"); e("s_lshr_b32 s12, s12, 16"); e("s_mul_i32 s13, s12, 21"); e("s_sub_u32 s13, s2, s13")
    e("s_mul_i32 s14, s13, 86"); e("s_lshr_b32 s14, s14, 8"); e("s_mul_i32 s15, s14, 3"); e("s_sub_u32 s15, s13, s15")
    e("v_lshrrev_b32 v1, 6, v0"); e("v_and_b32 v2, 63, v0")
    e("v_mul_u32_u24 v3, 3072, v1"); e("v_lshl_add_u32 v3, v2, 4, v3")
    e(f"s_mul_i32 s16, s12, {16 * 86016}"); e("s_mul_i32 s17, s14, 12288"); e("s_add_u32 s16, s16, s17"); e("s_lshl_b32 s17, s15, 10"); e("s_add_u32 s16, s16, s17")
    e("v_and_b32 v4, 15, v2"); e("v_mul_u32_u24 v4, 896, v4"); e("v_lshl_add_u32 v4, v1, 5, v4"); e("v_lshrrev_b32 v5, 4, v2"); e("v_lshl_add_u32 v4, v5, 3, v4")
    e("s_mul_i32 s18, s12, 86016"); e("s_mul_i32 s17, s15, 28672"); e("s_add_u32 s18, s18, s17"); e("s_lshl_b32 s17, s14, 7"); e("s_add_u32 s18, s18, s17")
    e("s_add_u32 s19, s18, 14336")
    e("s_mov_b32 s20, 0xffff0000")
    E.raw("    s_waitcnt lgkmcnt(0)")
    e(f"s_mov_b32 s6, {256 * 86016}"); e("s_mov_b32 s7, 0x20000"); e("s_mov_b32 s10, 1376256"); e("s_mov_b32 s11, 0x20000")
    for h in range(16):
        e(f"buffer_load_dwordx4 {vr(16 + 4 * h)}, v3, s[4:7], s16 offen {cfg.ylpol}")
        if h < 15: e("s_add_u32 s16, s16, 86016")
    for h in range(16):
        for d in range(4):
            s = 16 + 4 * h + d
            if h == 0:
                e(f"v_lshlrev_b32 v{8 + 2 * d}, 16, v{s}"); e(f"v_and_b32 v{9 + 2 * d}, s20, v{s}")
            else:
                e(f"v_lshlrev_b32 v6, 16, v{s}"); e(f"v_and_b32 v7, s20, v{s}")
                e(f"v_add_f32 v{8 + 2 * d}, v{8 + 2 * d}, v6"); e(f"v_add_f32 v{9 + 2 * d}, v{9 + 2 * d}, v7")
    for d in range(4): e(f"v_cvt_pk_bf16_f32 v{16 + d}, v{8 + 2 * d}, v{9 + 2 * d}")
    e("buffer_store_dwordx2 v[16:17], v4, s[8:11], s18 offen"); e("buffer_store_dwordx2 v[18:19], v4, s[8:11], s19 offen")
    E.label("L_done2"); e("s_endpgm")
    return E.text() + kd(NAME2, 80, 32, 80)

def build(cfg):
    s = f"; @launch kernel={NAME1} grid=(256,1,1) block=(256,1,1) lds={LDS}\n"
    s += f"; @launch kernel={NAME2} grid=(336,1,1) block=(256,1,1) lds=0\n"
    s += '.amdgcn_target "amdgcn-amd-amdhsa--gfx950"\n.text\n'
    return s + main_kernel(cfg) + reduce_kernel(cfg)

if __name__ == "__main__":
    cfg = Cfg()
    out = sys.argv[1] if len(sys.argv) > 1 else "k.s"
    for a in sys.argv[2:]:
        k, v = a.split("=")
        setattr(cfg, k, eval(v) if k in ("T", "stamps", "dbg") else v.replace("+", " "))
    open(out, "w").write(build(cfg))
```
